```python
import torch

def _softmax(x, axis=-1):
    return torch.softmax(x, dim=axis)
def _gelu(x):
    return torch.nn.functional.gelu(x, approximate="tanh")
def _silu(x):
    return torch.nn.functional.silu(x)
def _sigmoid(x):
    return torch.sigmoid(x)
def _layernorm(x, axis=-1, eps=1e-5):
    m = x.mean(dim=axis, keepdim=True)
    v = x.var(dim=axis, keepdim=True, unbiased=False)
    return (x - m) / torch.sqrt(v + eps)
def _scatter_add(tgt, idx, src, axis=0):
    return tgt.clone().index_add_(axis, idx, src)
def _segment_sum(src, seg, n):
    out = torch.zeros((n,) + src.shape[1:], dtype=src.dtype)
    return out.index_add_(0, seg, src)
def _pad(x, pw):
    flat = tuple(v for pair in reversed(pw) for v in pair)
    return torch.nn.functional.pad(x, flat)

kernel_name = 'concat_heads__softmax_full_mha__sliding_block__prompt'

def setup_inputs():

    _w = (lambda a: (lambda t: t.to(torch.bfloat16) if t.is_floating_point() else t)(torch.as_tensor(a)))
    def _A_setup():
        B, S, D = 1, 2048, 512
        return {
            "x": _w((lambda *s: torch.randn(*s, dtype=torch.bfloat16) * 0.2)(B, S, D)),
            "wqkv": _w((lambda *s: torch.randn(*s, dtype=torch.bfloat16) * 0.4)(D, 3 * D)),
            "wo": _w((lambda *s: torch.randn(*s, dtype=torch.bfloat16) * 0.1)(D, D)),
        }
    _A_in = _A_setup()

    def _B_setup():
        B, S, D = 1, 2048, 512
        return {
            "x": _w((lambda *s: torch.randn(*s, dtype=torch.bfloat16) * 0.4)(B, S, D)),
            "wqkv": _w((lambda *s: torch.randn(*s, dtype=torch.bfloat16) * 0.4)(D, 3 * D)),
            "wo": _w((lambda *s: torch.randn(*s, dtype=torch.bfloat16) * 0.05)(D, D)),
        }
    _B_in = _B_setup()

    return {
        "A_x": _A_in["x"],
        "A_wqkv": _A_in["wqkv"],
        "A_wo": _A_in["wo"],
        "B_x": _B_in["x"],
        "B_wqkv": _B_in["wqkv"],
        "B_wo": _B_in["wo"],
    }

def reference(A_x, A_wqkv, A_wo, B_x, B_wqkv, B_wo):
    def _A_ref(x, wqkv, wo):
        B, S, D = x.shape
        H = 32; Dh = D // H
        qkv = (lambda x, *d: x.permute(*d))((x @ wqkv).reshape(B, S, 3, H, Dh), 2, 0, 3, 1, 4)
        q, k, v = qkv[0], qkv[1], qkv[2]
        scale = Dh ** -0.5
        scores = torch.einsum("bhqd,bhkd->bhqk", q, k) * scale
        p = _softmax(scores, axis=-1)
        o = torch.einsum("bhqk,bhkd->bhqd", p, v)
        return (lambda x, *d: x.permute(*d))(o, 0, 2, 1, 3).reshape(B, S, D) @ wo

    def _B_ref(x, wqkv, wo):
        B, S, D = x.shape
        H = 32; Dh = D // H; W = 256
        qkv = (lambda x, *d: x.permute(*d))((x @ wqkv).reshape(B, S, 3, H, Dh), 2, 0, 3, 1, 4)
        q, k, v = qkv[0], qkv[1], qkv[2]
        scores = torch.einsum("bhqd,bhkd->bhqk", q, k) * (Dh ** -0.5)
        idx = torch.arange(S)
        mask = (idx[:, None] - idx[None, :] >= 0) & (idx[:, None] - idx[None, :] < W)
        scores = torch.where(mask[None, None], scores, -1e9)
        p = _softmax(scores, axis=-1)
        o = torch.einsum("bhqk,bhkd->bhqd", p, v)
        return (lambda x, *d: x.permute(*d))(o, 0, 2, 1, 3).reshape(B, S, D) @ wo

    a = _A_ref(A_x, A_wqkv, A_wo)
    b = _B_ref(B_x, B_wqkv, B_wo)
    return torch.concatenate([a, b], axis=-1)
```

```python
import sys
NAME = "concat_heads__softmax_full_mha__sliding_block__prompt"
HEADER = open("cdna_kernels/%s.s.ref" % NAME).read().split("; Override launch")[0]

class A:
    def __init__(s): s.l = []
    def __call__(s, t): s.l.append("  " + t)
    def lab(s, t): s.l.append(t + ":")
    def raw(s, t): s.l.append(t)
    def text(s): return "\n".join(s.l) + "\n"
def vr(b, n): return f"v[{b}:{b+n-1}]"
def sr(b, n): return f"s[{b}:{b+n-1}]"

WS_Q   = 0x000000
WS_KV  = 0x400000
WS_O   = 0xC00000
WS_END = 0x1000000
CSCALE = 0x3EB8AA3B
import struct
assert abs(struct.unpack("<f", struct.pack("<I", CSCALE))[0] - 0.25*1.4426950408889634) < 1e-7

def load_kernargs(a):
    a("s_load_dwordx16 s[32:47], s[0:1], 0")
    a("s_load_dwordx2 s[48:49], s[0:1], 64")

def srd(a, d, lo, hi, nbytes):
    a(f"s_mov_b32 s{d}, s{lo}")
    a(f"s_and_b32 s{d+1}, s{hi}, 0xffff")
    a(f"s_mov_b32 s{d+2}, 0x{nbytes:x}")
    a(f"s_mov_b32 s{d+3}, 0x00020000")

def wfrag_addr(a, vd, vt0, vt1, vlane, mode, s_ft64):
    if mode == 'qkv':
        a(f"v_and_b32 v{vt0}, 1, v{vlane}")
        a(f"v_lshlrev_b32 v{vt0}, 1, v{vt0}")
        a(f"v_bfe_u32 v{vt1}, v{vlane}, 1, 1")
        a(f"v_or_b32 v{vt0}, v{vt0}, v{vt1}")
        a(f"v_bfe_u32 v{vt1}, v{vlane}, 4, 1")
        a(f"v_lshlrev_b32 v{vt1}, 2, v{vt1}")
        a(f"v_or_b32 v{vt0}, v{vt0}, v{vt1}")
    else:
        a(f"v_and_b32 v{vt0}, 1, v{vlane}")
        a(f"v_lshlrev_b32 v{vt0}, 2, v{vt0}")
        a(f"v_bfe_u32 v{vt1}, v{vlane}, 1, 1")
        a(f"v_or_b32 v{vt0}, v{vt0}, v{vt1}")
        a(f"v_bfe_u32 v{vt1}, v{vlane}, 4, 1")
        a(f"v_lshlrev_b32 v{vt1}, 1, v{vt1}")
        a(f"v_or_b32 v{vt0}, v{vt0}, v{vt1}")
    a(f"v_lshlrev_b32 v{vt0}, 3, v{vt0}")
    a(f"v_add_u32 v{vt0}, s{s_ft64}, v{vt0}")
    a(f"v_bfe_u32 v{vt1}, v{vlane}, 3, 1")
    a(f"v_lshlrev_b32 v{vt1}, 6, v{vt1}")
    a(f"v_xor_b32 v{vt0}, v{vt0}, v{vt1}")
    a(f"v_bfe_u32 v{vt1}, v{vlane}, 2, 2")
    a(f"v_lshlrev_b32 v{vt1}, 7, v{vt1}")
    a(f"v_add_u32 v{vt0}, v{vt0}, v{vt1}")
    a(f"v_lshrrev_b32 v{vt1}, 5, v{vlane}")
    a(f"v_lshlrev_b32 v{vt1}, 10, v{vt1}")
    a(f"v_add_u32 v{vd}, v{vt0}, v{vt1}")

def kernel_qkv():
    a = A()
    a("s_cmp_ge_u32 s2, 256")
    a("s_cbranch_scc1 K1_END")
    load_kernargs(a)
    a("v_and_b32 v1, 63, v0")
    a("v_lshrrev_b32 v2, 6, v0")
    a("s_nop 0")
    a("v_readfirstlane_b32 s3, v2")
    a("s_and_b32 s4, s2, 7")
    a("s_lshr_b32 s5, s2, 3")
    a("s_lshr_b32 s6, s4, 2")
    a("s_and_b32 s7, s4, 1")
    a("s_lshl_b32 s7, s7, 3")
    a("s_and_b32 s8, s5, 7")
    a("s_add_u32 s7, s7, s8")
    a("s_lshr_b32 s8, s4, 1")
    a("s_and_b32 s8, s8, 1")
    a("s_lshl_b32 s8, s8, 2")
    a("s_lshr_b32 s9, s5, 3")
    a("s_add_u32 s8, s8, s9")
    a("s_waitcnt lgkmcnt(0)")
    a("s_cmp_eq_u32 s6, 0")
    a("s_cselect_b32 s50, s32, s38")
    a("s_cselect_b32 s51, s33, s39")
    a("s_cselect_b32 s52, s34, s40")
    a("s_cselect_b32 s53, s35, s41")
    srd(a, 12, 50, 51, 2048*1024)
    srd(a, 16, 52, 53, 512*3072)
    srd(a, 20, 48, 49, WS_END)
    a("s_cmp_ge_u32 s3, 4")
    a("s_cbranch_scc1 K1_LOADER")
    a("s_and_b32 s24, s3, 1")
    a("s_lshr_b32 s25, s3, 1")
    a("s_lshl_b32 s26, s25, 6")
    a("v_and_b32 v2, 31, v1")
    a("s_lshl_b32 s27, s24, 6")
    a("v_add_u32 v2, s27, v2")
    a("v_bfe_u32 v3, v2, 1, 3")
    a("v_lshlrev_b32 v2, 7, v2")
    a("v_lshrrev_b32 v8, 5, v1")
    for s in range(4):
        a(f"v_add_u32 v9, {2*s}, v8")
        a("v_xor_b32 v9, v9, v3")
        a("v_lshlrev_b32 v9, 4, v9")
        a(f"v_add_u32 v{4+s}, v2, v9")
    wfrag_addr(a, 10, 8, 9, 1, 'qkv', 26)
    a("v_add_u32 v10, 0x4000, v10")
    ACC = 32
    XF = [[128, 132], [152, 156]]
    WF = [[136, 140, 144], [160, 164, 168]]
    for r in range(96):
        a(f"v_mov_b32 v{ACC+r}, 0")
    def set_slot_addr(slot):
        for s in range(4):
            a(f"v_add_u32 v{12+s}, {slot*40960}, v{4+s}")
        a(f"v_add_u32 v16, {slot*40960}, v10")
    def read_frags(buf, s):
        for i in range(2):
            a(f"ds_read_b128 {vr(XF[buf][i],4)}, v{12+s} offset:{i*4096}")
        for t in range(3):
            for q in range(2):
                a(f"ds_read_b64_tr_b16 {vr(WF[buf][t]+2*q,2)}, v16 offset:{s*2048+q*512+t*8192}")
    def mfmas(buf):
        for i in range(2):
            for t in range(3):
                acc = vr(ACC+(i*3+t)*16, 16)
                if t < 2:
                    a(f"v_mfma_f32_32x32x16_bf16 {acc}, {vr(WF[buf][t],4)}, {vr(XF[buf][i],4)}, {acc}")
                else:
                    a(f"v_mfma_f32_32x32x16_bf16 {acc}, {vr(XF[buf][i],4)}, {vr(WF[buf][t],4)}, {acc}")
    a("s_barrier")
    set_slot_addr(0)
    read_frags(0, 0)
    for c in range(8):
        for s in range(4):
            buf = s & 1
            if s < 3:
                read_frags(buf ^ 1, s+1)
                a("s_waitcnt lgkmcnt(8)")
                mfmas(buf)
            else:
                a("s_waitcnt lgkmcnt(0)")
                if c < 7:
                    a("s_barrier")
                    set_slot_addr((c+1) % 4)
                    read_frags(buf ^ 1, 0)
                mfmas(buf)
    a("s_nop 15")
    a("s_nop 3")
    a("s_lshl_b32 s27, s8, 2")
    a("s_lshl_b32 s28, s25, 1")
    a("s_add_u32 s27, s27, s28")
    a("s_lshl_b32 s28, s7, 2")
    a("s_lshl_b32 s29, s24, 1")
    a("s_add_u32 s28, s28, s29")
    a("s_lshl_b32 s29, s27, 6")
    a("s_add_u32 s29, s29, s28")
    a("s_lshl_b32 s30, s29, 10")
    a("s_lshl_b32 s31, s6, 21")
    a("s_add_u32 s30, s30, s31")
    a("s_lshl_b32 s54, s29, 11")
    a("s_lshl_b32 s31, s6, 22")
    a("s_add_u32 s54, s54, s31")
    a(f"s_add_u32 s54, s54, 0x{WS_KV:x}")
    a("v_lshlrev_b32 v2, 4, v1")
    a("v_bfe_u32 v3, v1, 4, 1")
    a("v_lshlrev_b32 v3, 17, v3")
    a("v_lshrrev_b32 v4, 5, v1")
    a("v_lshlrev_b32 v4, 8, v4")
    a("v_add_u32 v3, v3, v4")
    a("v_and_b32 v4, 15, v1")
    a("v_lshlrev_b32 v4, 4, v4")
    a("v_add_u32 v3, v3, v4")
    a("v_add_u32 v3, 0x400, v3")
    a(f"s_mov_b32 s55, 0x{CSCALE:x}")
    T = 128
    for i in range(2):
        for t in range(3):
            acc = ACC+(i*3+t)*16
            if t == 0:
                for r in range(16):
                    a(f"v_mul_f32 v{acc+r}, s55, v{acc+r}")
            for r in range(8):
                a(f"v_cvt_pk_bf16_f32 v{T+r}, v{acc+2*r}, v{acc+2*r+1}")
            if t == 0:
                a(f"s_add_u32 s56, s30, {i*1024}")
                a(f"buffer_store_dwordx4 {vr(T,4)}, v2, s[20:23], s56 offen")
                a(f"s_add_u32 s56, s30, {i*1024+65536}")
                a(f"buffer_store_dwordx4 {vr(T+4,4)}, v2, s[20:23], s56 offen")
            elif t == 1:
                a(f"s_add_u32 s56, s54, {i*2048}")
                a(f"buffer_store_dwordx4 {vr(T,4)}, v2, s[20:23], s56 offen")
                a(f"s_add_u32 s56, s54, {i*2048+131072}")
                a(f"buffer_store_dwordx4 {vr(T+4,4)}, v2, s[20:23], s56 offen")
            else:
                a(f"s_add_u32 s56, s54, {i*2048}")
                a(f"buffer_store_dwordx4 {vr(T,4)}, v3, s[20:23], s56 offen")
                a(f"buffer_store_dwordx4 {vr(T+4,4)}, v3, s[20:23], s56 offen offset:512")
            T = 136 if T == 128 else 128
            a("s_nop 1")
    a("s_branch K1_END")
    a.lab("K1_LOADER")
    a("s_sub_u32 s24, s3, 4")
    a("v_lshrrev_b32 v2, 3, v1")
    a("v_lshrrev_b32 v3, 1, v2")
    a("v_and_b32 v4, 7, v1")
    a("v_xor_b32 v4, v4, v3")
    a("v_lshlrev_b32 v4, 4, v4")
    a("v_lshlrev_b32 v5, 10, v2")
    a("v_add_u32 v5, v5, v4")
    a("v_xor_b32 v6, 64, v5")
    a("v_bfe_u32 v3, v1, 4, 1")
    a("v_lshlrev_b32 v3, 2, v3")
    a("v_and_b32 v4, 7, v1")
    a("v_xor_b32 v4, v4, v3")
    a("v_lshlrev_b32 v4, 4, v4")
    a("v_mul_u32_u24 v7, 3072, v2")
    a("v_add_u32 v7, v7, v4")
    a("s_lshl_b32 s25, s7, 7")
    a("s_lshl_b32 s26, s24, 5")
    a("s_add_u32 s25, s25, s26")
    a("s_lshl_b32 s25, s25, 10")
    a("s_mul_i32 s26, s24, 49152")
    a("s_lshl_b32 s27, s8, 7")
    a("s_add_u32 s26, s26, s27")
    a("s_lshl_b32 s27, s24, 12")
    a("s_lshl_b32 s28, s24, 11")
    a("s_add_u32 s28, s28, 0x4000")
    def issue_stage(c):
        slot = c % 4
        for i in range(4):
            a(f"s_add_u32 m0, s27, {slot*40960 + i*1024}")
            a(f"s_add_u32 s29, s25, {i*8192 + c*128}")
            a(f"buffer_load_dwordx4 v{5 + (i&1)}, s[12:15], s29 offen lds")
        for g in range(3):
            for i in range(2):
                a(f"s_add_u32 m0, s28, {slot*40960 + g*8192 + i*1024}")
                a(f"s_add_u32 s29, s26, {(64*c + 8*i)*3072 + g*1024}")
                a(f"buffer_load_dwordx4 v7, s[16:19], s29 offen lds")
    for c in range(3): issue_stage(c)
    a("s_waitcnt vmcnt(20)")
    a("s_barrier")
    for b in range(7):
        if b + 3 < 8:
            issue_stage(b+3)
            a("s_waitcnt vmcnt(20)")
        else:
            a(f"s_waitcnt vmcnt({(7-(b+1))*10})")
        a("s_barrier")
    a.lab("K1_END")
    a("s_endpgm")
    return a.text()

ONES = 0x3F803F80
NINF = 0xFF800000
def kernel_attn():
    a = A()
    a("s_cmp_ge_u32 s2, 256")
    a("s_cbranch_scc1 K2_END")
    load_kernargs(a)
    a("v_and_b32 v1, 63, v0")
    a("v_lshrrev_b32 v2, 6, v0")
    a("s_nop 0")
    a("v_readfirstlane_b32 s3, v2")
    a("s_and_b32 s4, s2, 7")
    a("s_lshr_b32 s5, s2, 3")
    a("s_and_b32 s6, s5, 3")
    a("s_lshl_b32 s4, s4, 2")
    a("s_add_u32 s6, s6, s4")
    a("s_lshr_b32 s7, s5, 2")
    a("s_lshl_b32 s8, s7, 3")
    a("s_add_u32 s8, s8, s3")
    a("s_waitcnt lgkmcnt(0)")
    srd(a, 20, 48, 49, WS_END)
    a("v_lshlrev_b32 v2, 4, v1")
    a("s_lshl_b32 s9, s6, 17")
    a(f"s_add_u32 s10, s9, 0x{WS_KV + 0x400000:x}")
    a(f"s_add_u32 s9, s9, 0x{WS_KV:x}")
    a("s_lshl_b32 s11, s7, 14")
    a("s_add_u32 s10, s10, s11")
    a("s_lshl_b32 s11, s3, 12")
    a("s_add_u32 s10, s10, s11")
    a("s_sub_u32 s10, s10, 0x4000")
    a("s_cmp_eq_u32 s7, 0")
    a("s_cselect_b32 s12, 1, 0")
    a("s_cmp_lt_u32 s3, 4")
    a("s_cselect_b32 s13, s12, 0")
    a("s_cmp_eq_u32 s13, 1")
    a("s_cselect_b32 s10, 0x7ff00000, s10")
    a("s_add_u32 s12, s11, 0x20000")
    for i in range(4):
        a(f"s_add_u32 m0, s12, {i*1024}")
        a(f"s_add_u32 s13, s10, {i*1024}")
        a("buffer_load_dwordx4 v2, s[20:23], s13 offen lds")
    a("s_lshl_b32 s14, s6, 6")
    a("s_add_u32 s14, s14, s8")
    a("s_lshl_b32 s14, s14, 10")
    a(f"s_add_u32 s15, s14, 0x{WS_Q+0x200000:x}")
    QB, QA = 8, 12
    a(f"buffer_load_dwordx4 {vr(QB,4)}, v2, s[20:23], s15 offen")
    a(f"buffer_load_dwordx4 {vr(QA,4)}, v2, s[20:23], s14 offen")
    a("s_lshl_b32 s11, s3, 11")
    a("s_add_u32 s9, s9, s11")
    for s in range(8):
        for i in range(2):
            a(f"s_add_u32 m0, s11, {s*16384 + i*1024}")
            a(f"s_add_u32 s13, s9, {s*16384 + i*1024}")
            a("buffer_load_dwordx4 v2, s[20:23], s13 offen lds")
    K0, K1 = 16, 20
    V0, V1 = 24, 32
    P0, P1 = 40, 48
    S0, S1 = 64, 80
    O, C = 96, 112
    CD, CF, NEG = 128, 144, 160
    KB = 176
    a("v_lshrrev_b32 v3, 5, v1")
    a("v_lshlrev_b32 v3, 8, v3")
    a("v_and_b32 v4, 15, v1")
    a("v_lshlrev_b32 v4, 4, v4")
    a("v_add_u32 v3, v3, v4")
    a("v_add_u32 v3, 0x400, v3")
    a("s_mov_b32 s16, 0x0000ffff")
    a("s_mov_b32 s17, 0x0000ffff")
    for r in range(16):
        a(f"v_mov_b32 v{V0+r}, 0x{ONES:x}")
    a("v_and_b32 v4, 31, v1")
    a("v_lshrrev_b32 v5, 5, v1")
    a("v_lshlrev_b32 v5, 2, v5")
    a("v_sub_u32 v4, v4, v5")
    a(f"v_mov_b32 v6, 0x{NINF:x}")
    for r in range(16):
        b = 8*(r>>2) + (r&3)
        a(f"v_subrev_u32 v5, {b}, v4")
        a("v_ashrrev_i32 v5, 31, v5")
        a(f"v_and_b32 v{CD+r}, v5, v6")
        a(f"v_xor_b32 v{CF+r}, v{CD+r}, v6")
        a(f"v_mov_b32 v{NEG+r}, v6")
    a("s_lshl_b32 s18, s3, 11")
    a("s_add_u32 s18, s18, 0x20000")
    a("v_add_u32 v6, s18, v2")
    a("v_add_u32 v7, s18, v3")
    a("s_waitcnt vmcnt(16)")
    a("s_barrier")
    for p in range(9):
        a(f"ds_read_b128 {vr(KB+4*p,4)}, v6 offset:{p*2048}")
    def cmax(S, first):
        if first:
            a(f"v_max3_f32 v4, v{S}, v{S+1}, v{S+2}")
            rest = list(range(3, 15, 2))
            for r in rest: a(f"v_max3_f32 v4, v4, v{S+r}, v{S+r+1}")
            a(f"v_max_f32 v4, v4, v{S+15}")
        else:
            for r in range(0, 16, 2): a(f"v_max3_f32 v4, v4, v{S+r}, v{S+r+1}")
    def qk(S, K, Q, Cvalid, p, tag):
        if p < 8:
            a(f"s_cmp_lt_u32 s8, {8-p}")
            a(f"s_cbranch_scc1 L{tag}_inv")
            a(f"v_mfma_f32_32x32x16_bf16 {vr(S,16)}, {vr(K,4)}, {vr(Q,4)}, {Cvalid}")
            a(f"s_branch L{tag}_done")
            a.lab(f"L{tag}_inv")
            a(f"v_mfma_f32_32x32x16_bf16 {vr(S,16)}, {vr(K,4)}, {vr(Q,4)}, {vr(NEG,16)}")
            a.lab(f"L{tag}_done")
        else:
            a(f"v_mfma_f32_32x32x16_bf16 {vr(S,16)}, {vr(K,4)}, {vr(Q,4)}, {Cvalid}")
    a("s_waitcnt lgkmcnt(0)")
    Sb = [S0, S1]
    order = [8,7,6,5,4,3,2,1,0]
    def cfor(p, base):
        return vr(CD,16) if p == 8 else (vr(CF,16) if p == 0 else base)
    qk(Sb[0], KB+4*order[0], QB, cfor(order[0], "0"), order[0], "B1_%d" % order[0])
    for i, p in enumerate(order):
        if i + 1 < len(order):
            pn = order[i+1]
            qk(Sb[(i+1)&1], KB+4*pn, QB, cfor(pn, "0"), pn, "B1_%d" % pn)
            a("s_nop 7")
        else:
            a("s_nop 11")
        a("s_nop 3")
        cmax(Sb[i&1], i == 0)
    def crosshalf_max():
        a("v_mov_b32 v5, v4")
        a("s_nop 1")
        a("v_permlane32_swap_b32 v4, v5")
        a("s_nop 1")
        a("v_max_f32 v4, v4, v5")
    crosshalf_max()
    for r in range(16):
        a(f"v_sub_f32 v{C+r}, 0, v4")
    for r in range(16):
        a(f"v_sub_f32 v{CD+r}, v{CD+r}, v4")
        a(f"v_sub_f32 v{CF+r}, v{CF+r}, v4")
    for r in range(16):
        a(f"v_mov_b32 v{O+r}, 0")
    for r in range(4):
        a(f"v_mov_b32 v{P1+4+r}, 0")
    EX_ON = lambda: a("s_mov_b64 exec, s[16:17]")
    EX_OFF = lambda: a("s_mov_b64 exec, -1")
    def tile(Sc, Pc, Pp, Vc, Vp, qk_next, k_load, v_load, wait_top, wait_v):
        if wait_top is not None: a(f"s_waitcnt lgkmcnt({wait_top})")
        if qk_next: qk_next()
        if k_load: k_load()
        for i in range(8):
            a(f"v_exp_f32 v{Sc+2*i}, v{Sc+2*i}")
            a(f"v_exp_f32 v{Sc+2*i+1}, v{Sc+2*i+1}")
            if i >= 1:
                a(f"v_cvt_pk_bf16_f32 v{Pc+i-1}, v{Sc+2*i-2}, v{Sc+2*i-1}")
            if i == 1:
                a(f"v_mfma_f32_32x32x16_bf16 {vr(O,16)}, {vr(Vp+4,4)}, {vr(Pp+4,4)}, {vr(O,16)}")
                if v_load:
                    EX_ON(); v_load(); EX_OFF()
            if i == 5:
                if wait_v is not None: a(f"s_waitcnt lgkmcnt({wait_v})")
                a(f"v_mfma_f32_32x32x16_bf16 {vr(O,16)}, {vr(Vc,4)}, {vr(Pc,4)}, {vr(O,16)}")
        a(f"v_cvt_pk_bf16_f32 v{Pc+7}, v{Sc+14}, v{Sc+15}")
    Vb, Pb = [V0, V1], [P0, P1]
    def vloadB(p, dst):
        def f():
            a(f"ds_read_b128 {vr(dst,4)}, v7 offset:{p*2048}")
            a(f"ds_read_b128 {vr(dst+4,4)}, v7 offset:{p*2048+512}")
        return f
    EX_ON(); vloadB(order[0], V0)(); EX_OFF()
    qk(Sb[0], KB+4*order[0], QB, cfor(order[0], vr(C,16)), order[0], "B2_%d" % order[0])
    a("s_nop 15")
    for i, p in enumerate(order):
        last = i + 1 == len(order)
        pn = None if last else order[i+1]
        tile(Sb[i&1], Pb[i&1], Pb[(i+1)&1], Vb[i&1], Vb[(i+1)&1],
             None if last else (lambda pn=pn, i=i: qk(Sb[(i+1)&1], KB+4*pn, QB, cfor(pn, vr(C,16)), pn, "B2_%d" % pn)),
             None,
             None if last else vloadB(pn, Vb[(i+1)&1]),
             None, 0 if last else 2)
    a("s_nop 1")
    a(f"v_mfma_f32_32x32x16_bf16 {vr(O,16)}, {vr(V0+4,4)}, {vr(P0+4,4)}, {vr(O,16)}")
    def finish_store(br):
        a("s_nop 15")
        a("s_nop 3")
        a(f"v_rcp_f32 v5, v{O+8}")
        a("s_nop 0")
        for r in range(8):
            a(f"v_mul_f32 v{O+r}, v{O+r}, v5")
        for r in range(4):
            a(f"v_cvt_pk_bf16_f32 v{P0+r}, v{O+2*r}, v{O+2*r+1}")
        a("s_lshl_b32 s13, s8, 5")
        a("s_add_u32 s13, s13, s6")
        a("s_lshl_b32 s13, s13, 10")
        a(f"s_add_u32 s13, s13, 0x{WS_O + br*0x200000:x}")
        a(f"buffer_store_dwordx4 {vr(P0,4)}, v2, s[20:23], s13 offen")
    finish_store(1)
    a("s_mov_b32 s19, 0")
    a("s_waitcnt vmcnt(1)")
    a("s_barrier")
    a("v_mov_b32 v6, v2")
    a("v_mov_b32 v7, v3")
    a(f"ds_read_b128 {vr(K0,4)}, v6")
    a("s_waitcnt lgkmcnt(0)")
    a(f"v_mfma_f32_32x32x16_bf16 {vr(S0,16)}, {vr(K0,4)}, {vr(QA,4)}, 0")
    a("s_nop 15")
    cmax(S0, True)
    a.lab("A_RESTART")
    crosshalf_max()
    for r in range(16):
        a(f"v_sub_f32 v{C+r}, 0, v4")
    for r in range(16):
        a(f"v_mov_b32 v{O+r}, 0")
    for r in range(4):
        a(f"v_mov_b32 v{P1+4+r}, 0")
    a("v_mov_b32 v6, v2")
    a("v_mov_b32 v7, v3")
    a(f"ds_read_b128 {vr(K0,4)}, v6")
    a(f"ds_read_b128 {vr(K1,4)}, v6 offset:2048")
    EX_ON()
    a(f"ds_read_b128 {vr(V0,4)}, v7")
    a(f"ds_read_b128 {vr(V0+4,4)}, v7 offset:512")
    EX_OFF()
    a("s_waitcnt lgkmcnt(3)")
    a(f"v_mfma_f32_32x32x16_bf16 {vr(S0,16)}, {vr(K0,4)}, {vr(QA,4)}, {vr(C,16)}")
    a("s_nop 15")
    a("s_mov_b32 s24, 8")
    Kb = [K0, K1]
    a.raw(".p2align 6")
    a.lab("A_LOOP")
    for u in range(8):
        p = u & 1
        tile(Sb[p], Pb[p], Pb[p^1], Vb[p], Vb[p^1],
             lambda: a(f"v_mfma_f32_32x32x16_bf16 {vr(Sb[p^1],16)}, {vr(Kb[p^1],4)}, {vr(QA,4)}, {vr(C,16)}"),
             lambda: a(f"ds_read_b128 {vr(Kb[p],4)}, v6 offset:{(u+2)*2048}"),
             lambda: (a(f"ds_read_b128 {vr(Vb[p^1],4)}, v7 offset:{(u+1)*2048}"), a(f"ds_read_b128 {vr(Vb[p^1]+4,4)}, v7 offset:{(u+1)*2048+512}")),
             2, 3)
    a("v_add_u32 v6, 0x4000, v6")
    a("v_add_u32 v7, 0x4000, v7")
    a("s_sub_u32 s24, s24, 1")
    a("s_cmp_lg_u32 s24, 0")
    a("s_cbranch_scc1 A_LOOP")
    a("s_nop 1")
    a(f"v_mfma_f32_32x32x16_bf16 {vr(O,16)}, {vr(V1+4,4)}, {vr(P1+4,4)}, {vr(O,16)}")
    a("s_waitcnt lgkmcnt(0)")
    a("s_cmp_lg_u32 s19, 0")
    a("s_cbranch_scc1 A_FIN")
    a("s_nop 15")
    a("s_nop 3")
    a(f"v_max3_f32 v4, |v{O}|, |v{O+1}|, |v{O+2}|")
    a(f"v_max3_f32 v4, v4, |v{O+3}|, |v{O+4}|")
    a(f"v_max3_f32 v4, v4, |v{O+5}|, |v{O+6}|")
    a(f"v_max3_f32 v4, v4, |v{O+7}|, |v{O+8}|")
    a(f"v_add_f32 v5, v{O}, v{O+1}")
    for r in range(2, 9): a(f"v_add_f32 v5, v5, v{O+r}")
    a("v_and_b32 v5, 0x7fffffff, v5")
    a("v_max_i32 v4, v4, v5")
    a("s_mov_b32 s25, 0x7b800000")
    a("v_cmp_gt_i32 vcc, s25, v4")
    a("s_nop 4")
    a("s_cmp_eq_u64 vcc, -1")
    a("s_cbranch_scc1 A_FIN")
    a("s_mov_b32 s19, 1")
    a("v_mov_b32 v6, v2")
    a(f"v_mov_b32 v4, 0x{NINF:x}")
    a("s_mov_b32 s24, 64")
    a.lab("A_MAXLOOP")
    a(f"ds_read_b128 {vr(K0,4)}, v6")
    a("v_add_u32 v6, 0x800, v6")
    a("s_waitcnt lgkmcnt(0)")
    a(f"v_mfma_f32_32x32x16_bf16 {vr(S0,16)}, {vr(K0,4)}, {vr(QA,4)}, 0")
    a("s_nop 15")
    cmax(S0, False)
    a("s_sub_u32 s24, s24, 1")
    a("s_cmp_lg_u32 s24, 0")
    a("s_cbranch_scc1 A_MAXLOOP")
    a("s_branch A_RESTART")
    a.lab("A_FIN")
    finish_store(0)
    a.lab("K2_END")
    a("s_endpgm")
    return a.text()

def kernel_out():
    a = A()
    a("s_cmp_ge_u32 s2, 256")
    a("s_cbranch_scc1 K3_END")
    load_kernargs(a)
    a("v_and_b32 v1, 63, v0")
    a("v_lshrrev_b32 v2, 6, v0")
    a("s_nop 0")
    a("v_readfirstlane_b32 s3, v2")
    a("s_and_b32 s4, s2, 7")
    a("s_lshr_b32 s5, s2, 3")
    a("s_lshr_b32 s6, s4, 2")
    a("s_and_b32 s7, s4, 3")
    a("s_lshl_b32 s7, s7, 2")
    a("s_and_b32 s8, s5, 3")
    a("s_add_u32 s7, s7, s8")
    a("s_lshr_b32 s8, s5, 2")
    a("s_waitcnt lgkmcnt(0)")
    a("s_cmp_eq_u32 s6, 0")
    a("s_cselect_b32 s50, s36, s42")
    a("s_cselect_b32 s51, s37, s43")
    srd(a, 16, 50, 51, 512*1024)
    srd(a, 20, 48, 49, WS_END)
    srd(a, 12, 44, 45, 2048*2048)
    a("v_lshrrev_b32 v2, 3, v1")
    a("v_bfe_u32 v3, v1, 4, 1")
    a("v_lshlrev_b32 v3, 2, v3")
    a("v_and_b32 v4, 7, v1")
    a("v_xor_b32 v4, v4, v3")
    a("v_lshlrev_b32 v4, 4, v4")
    a("v_lshlrev_b32 v7, 10, v2")
    a("v_add_u32 v7, v7, v4")
    a("s_lshl_b32 s25, s3, 17")
    a("s_lshl_b32 s26, s8, 7")
    a("s_add_u32 s25, s25, s26")
    a("s_lshl_b32 s27, s3, 14")
    for i in range(16):
        a(f"s_add_u32 m0, s27, {i*1024}")
        a(f"s_add_u32 s29, s25, {i*8192}")
        a("buffer_load_dwordx4 v7, s[16:19], s29 offen lds")
    a("v_lshlrev_b32 v2, 4, v1")
    a("s_lshl_b32 s24, s7, 2")
    a("s_add_u32 s24, s24, s3")
    a("s_lshl_b32 s25, s24, 15")
    a("s_lshl_b32 s26, s6, 21")
    a("s_add_u32 s25, s25, s26")
    a(f"s_add_u32 s25, s25, 0x{WS_O:x}")
    OFR = 64
    for h in range(32):
        if h % 4 == 0 and h: a("s_add_u32 s25, s25, 4096")
        a(f"buffer_load_dwordx4 {vr(OFR+4*h,4)}, v2, s[20:23], s25 offen offset:{(h%4)*1024}")
    a("s_mov_b32 s28, 0")
    wfrag_addr(a, 10, 8, 9, 1, 'out', 28)
    a("s_mov_b32 s28, 64")
    wfrag_addr(a, 11, 8, 9, 1, 'out', 28)
    a("v_xor_b32 v11, 64, v10")
    ACC = 16
    for r in range(32): a(f"v_mov_b32 v{ACC+r}, 0")
    WF = [[48, 52], [56, 60]]
    a("s_waitcnt vmcnt(32)")
    a("s_barrier")
    def rd(buf, k):
        for ft in range(2):
            for q in range(2):
                off = (k % 16) * 2048 + q * 512
                a(f"ds_read_b64_tr_b16 {vr(WF[buf][ft]+2*q,2)}, v{10+ft} offset:{off}")
    rd(0, 0)
    for k in range(32):
        buf = k & 1
        if k + 1 < 32:
            if (k + 1) % 16 == 0:
                a("v_add_u32 v10, 0x8000, v10")
                a("v_add_u32 v11, 0x8000, v11")
            rd(buf ^ 1, k + 1)
            a(f"s_waitcnt vmcnt({31-k}) lgkmcnt(4)")
        else:
            a("s_waitcnt vmcnt(0) lgkmcnt(0)")
        for ft in range(2):
            acc = vr(ACC+16*ft, 16)
            a(f"v_mfma_f32_32x32x16_bf16 {acc}, {vr(WF[buf][ft],4)}, {vr(OFR+4*k,4)}, {acc}")
    a("s_nop 15")
    a("s_nop 3")
    a("v_and_b32 v2, 31, v1")
    a("v_lshlrev_b32 v2, 11, v2")
    a("v_lshrrev_b32 v3, 5, v1")
    a("v_lshlrev_b32 v3, 5, v3")
    a("v_add_u32 v2, v2, v3")
    a("s_lshl_b32 s25, s24, 16")
    a("s_lshl_b32 s26, s6, 10")
    a("s_add_u32 s25, s25, s26")
    a("s_lshl_b32 s26, s8, 7")
    a("s_add_u32 s25, s25, s26")
    for ft in range(2):
        for r in range(8):
            a(f"v_cvt_pk_bf16_f32 v{48+8*ft+r}, v{ACC+16*ft+2*r}, v{ACC+16*ft+2*r+1}")
        a(f"buffer_store_dwordx4 {vr(48+8*ft,4)}, v2, s[12:15], s25 offen offset:{ft*64}")
        a(f"buffer_store_dwordx4 {vr(48+8*ft+4,4)}, v2, s[12:15], s25 offen offset:{ft*64+16}")
    a.lab("K3_END")
    a("s_endpgm")
    return a.text()

def kd(name, vgpr, sgpr=102):
    return f""".p2align 6
.amdhsa_kernel {name}
  .amdhsa_next_free_vgpr {vgpr}
  .amdhsa_next_free_sgpr {sgpr}
  .amdhsa_accum_offset {(vgpr+3)//4*4}
  .amdhsa_group_segment_fixed_size 0
  .amdhsa_kernarg_size 72
  .amdhsa_user_sgpr_count 2
  .amdhsa_user_sgpr_kernarg_segment_ptr 1
  .amdhsa_system_sgpr_workgroup_id_x 1
.end_amdhsa_kernel
"""
def build(extra_launches=0):
    ks = [("qkv_kernel", kernel_qkv(), 176, 512, 163840),
          ("attn_kernel", kernel_attn(), 216, 512, 163840),
          ("outp_kernel", kernel_out(), 192, 256, 65536)]
    s = HEADER
    for n, _, _, blk, lds in ks:
        s += f"; @launch kernel={n} grid=(256,1,1) block=({blk},1,1) lds={lds}\n"
    for i in range(extra_launches):
        s += f"; @launch kernel=nop_kernel grid=(256,1,1) block=(64,1,1) lds=0\n"
    s += '.amdgcn_target "amdgcn-amd-amdhsa--gfx950"\n.text\n'
    for n, body, _, _, _ in ks:
        s += f".globl {n}\n.p2align 8\n.type {n},@function\n{n}:\n{body}"
    if extra_launches:
        s += ".globl nop_kernel\n.p2align 8\n.type nop_kernel,@function\nnop_kernel:\n  s_endpgm\n"
    s += '.section .rodata,"a"\n'
    for n, _, v, _, _ in ks:
        s += kd(n, v, 64)
    if extra_launches:
        s += kd("nop_kernel", 8, 16)
    return s
if __name__ == "__main__":
    out = sys.argv[1] if len(sys.argv) > 1 else "cdna_kernels/%s.s" % NAME
    extra = int(sys.argv[2]) if len(sys.argv) > 2 else 0
    open(out, "w").write(build(extra))
    print("wrote", out)
```
